```python
import torch

def _softmax(x, axis=-1):
    return torch.softmax(x, dim=axis)
def _gelu(x):
    return torch.nn.functional.gelu(x, approximate="tanh")
def _silu(x):
    return torch.nn.functional.silu(x)
def _sigmoid(x):
    return torch.sigmoid(x)
def _layernorm(x, axis=-1, eps=1e-5):
    m = x.mean(dim=axis, keepdim=True)
    v = x.var(dim=axis, keepdim=True, unbiased=False)
    return (x - m) / torch.sqrt(v + eps)
def _scatter_add(tgt, idx, src, axis=0):
    return tgt.clone().index_add_(axis, idx, src)
def _segment_sum(src, seg, n):
    out = torch.zeros((n,) + src.shape[1:], dtype=src.dtype)
    return out.index_add_(0, seg, src)
def _pad(x, pw):
    flat = tuple(v for pair in reversed(pw) for v in pair)
    return torch.nn.functional.pad(x, flat)

kernel_name = 'standalone__mha_softmax__sampling'

def setup_inputs():

    _w = (lambda a: (lambda t: t.to(torch.bfloat16) if t.is_floating_point() else t)(torch.as_tensor(a)))
    B, H, Sq, Sk, D = 8, 32, 4, 4096, 192
    return {
        "q": _w((lambda *s: torch.randn(*s, dtype=torch.bfloat16) * 0.8)(B, H, Sq, D)),
        "k": _w((lambda *s: torch.randn(*s, dtype=torch.bfloat16) * 0.8)(B, H, Sk, D)),
        "v": _w((lambda *s: torch.randn(*s, dtype=torch.bfloat16) * 0.05)(B, H, Sk, D)),
    }

def reference(q, k, v):
    scale = q.shape[-1] ** -0.5
    scores = torch.einsum("bhqd,bhkd->bhqk", q, k) * scale
    p = _softmax(scores, axis=-1)
    return torch.einsum("bhqk,bhkd->bhqd", p, v)
```

```python
import sys, struct, math

HEAD_BYTES = 4096 * 384
GROUP_BYTES = 32 * 384
NW = 4
STEP = NW * GROUP_BYTES
NIT = HEAD_BYTES // STEP

def f2u(x):
    return struct.unpack("<I", struct.pack("<f", x))[0]

C_SCALE = math.log2(math.e) / math.sqrt(192.0)

class Asm:
    def __init__(self):
        self.l = []
    def __call__(self, s):
        self.l.append("    " + s)
    def label(self, s):
        self.l.append(s + ":")
    def c(self, s):
        self.l.append("    ; " + s)
    def text(self):
        return "\n".join(self.l) + "\n"

def gen(name="standalone__mha_softmax__sampling_kernel", fine=True, stagger=5, flags="nt", stamps=False,
        header=True, warm_epilogue=False):
    a = Asm()
    V_KOFF, V_VMOFF, V_VSOFF, V_SELP = 1, 2, 3, 4
    V_M, V_MC, V_L = 5, 6, 7
    V_T0, V_T1, V_T2, V_T3 = 8, 9, 10, 11
    V_PK = 12
    V_PP = 16
    V_LANE = 18
    V_Q = 20
    V_D = 32
    V_P = 48
    V_VM = 56
    V_VS = 88
    V_VT = 104
    V_VT2 = 136
    V_O = 152
    V_O2 = 184
    NVGPR = 216
    A_K = 0
    NAGPR = 48
    S_KSRD, S_VSRD = 12, 16
    S_OFFA, S_OFFB, S_CNT, S_C, S_SEL0, S_SEL1 = 20, 21, 22, 24, 25, 26
    S_WAVE = 3
    def vr(b, n=4): return f"v[{b}:{b+n-1}]"
    def ar(b, n=4): return f"a[{b}:{b+n-1}]"

    a.label(name)
    a(f"s_cmp_ge_u32 s2, 256")
    a(f"s_cbranch_scc1 L_done")
    a("s_load_dwordx8 s[4:11], s[0:1], 0")
    if stamps:
        a("s_load_dwordx2 s[44:45], s[0:1], 40")
        a("s_memrealtime s[40:41]")
    a(f"v_lshrrev_b32 v{V_T0}, 6, v0")
    a(f"v_and_b32 v{V_LANE}, 63, v0")
    a(f"v_readfirstlane_b32 s{S_WAVE}, v{V_T0}")
    a(f"v_and_b32 v{V_T1}, 15, v{V_LANE}")
    a(f"v_lshrrev_b32 v{V_T2}, 4, v{V_LANE}")
    a(f"v_lshrrev_b32 v{V_T0}, 1, v{V_T1}")
    a(f"v_mul_u32_u24 v{V_KOFF}, 384, v{V_T0}")
    a(f"v_and_b32 v{V_T0}, 1, v{V_T1}")
    a(f"v_lshl_add_u32 v{V_T0}, v{V_T2}, 1, v{V_T0}")
    a(f"v_lshl_add_u32 v{V_KOFF}, v{V_T0}, 4, v{V_KOFF}")
    a(f"v_mul_u32_u24 v{V_T3}, 768, v{V_T2}")
    a(f"v_lshl_add_u32 v{V_VMOFF}, v{V_T1}, 4, v{V_T3}")
    a(f"v_and_b32 v{V_T0}, 7, v{V_T1}")
    a(f"v_lshl_add_u32 v{V_VSOFF}, v{V_T0}, 4, v{V_T3}")
    a(f"v_lshrrev_b32 v{V_T0}, 3, v{V_T1}")
    a(f"v_mul_u32_u24 v{V_T0}, 384, v{V_T0}")
    a(f"v_add_u32 v{V_VSOFF}, v{V_VSOFF}, v{V_T0}")
    a(f"v_bfe_u32 v{V_T0}, v{V_T1}, 2, 1")
    a(f"v_and_b32 v{V_T3}, 3, v{V_T1}")
    a(f"v_mul_u32_u24 v{V_D}, 3, v{V_T0}")
    a(f"v_xor_b32 v{V_T3}, v{V_T3}, v{V_D}")
    a(f"v_mul_u32_u24 v{V_T3}, 384, v{V_T3}")
    a(f"v_lshl_add_u32 v{V_D}, v{V_T2}, 1, v{V_T0}")
    a(f"v_lshl_add_u32 v{V_T3}, v{V_D}, 4, v{V_T3}")
    a(f"s_mul_i32 s27, s2, {stagger}")
    a(f"s_and_b32 s27, s27, {NIT-1}")
    a(f"s_mul_i32 s27, s27, {STEP}")
    a(f"s_mul_i32 s28, s{S_WAVE}, {GROUP_BYTES}")
    a(f"s_add_u32 s{S_OFFA}, s27, s28")
    a(f"s_add_u32 s{S_OFFB}, s{S_OFFA}, 6144")
    a(f"s_mul_i32 s27, s2, {HEAD_BYTES}")
    a(f"s_mul_i32 s28, s2, 1536")
    a(f"s_mov_b32 s{S_KSRD+2}, {HEAD_BYTES}")
    a(f"s_mov_b32 s{S_KSRD+3}, 0x20000")
    a(f"s_mov_b32 s{S_VSRD+2}, {HEAD_BYTES}")
    a(f"s_mov_b32 s{S_VSRD+3}, 0x20000")
    a("s_waitcnt lgkmcnt(0)")
    a(f"s_add_u32 s{S_KSRD}, s6, s27")
    a(f"s_addc_u32 s{S_KSRD+1}, s7, 0")
    a(f"s_add_u32 s{S_VSRD}, s8, s27")
    a(f"s_addc_u32 s{S_VSRD+1}, s9, 0")
    a(f"s_add_u32 s4, s4, s28")
    a(f"s_addc_u32 s5, s5, 0")
    a(f"s_add_u32 s10, s10, s28")
    a(f"s_addc_u32 s11, s11, 0")

    def k_loads(n):
        so = f"s{S_OFFA}" if n < 2 else f"s{S_OFFB}"
        for seg in range(3):
            imm = (n & 1) * 3072 + seg * 128
            a(f"buffer_load_dwordx4 {ar(A_K + (n*3+seg)*4)}, v{V_KOFF}, s[{S_KSRD}:{S_KSRD+3}], {so} offen offset:{imm} {flags}")
    def vm_load(r):
        n, m = r >> 1, r & 1
        so = f"s{S_OFFA}" if n < 2 else f"s{S_OFFB}"
        imm = (n & 1) * 3072 + m * 384
        a(f"buffer_load_dwordx4 {vr(V_VM + r*4)}, v{V_VMOFF}, s[{S_VSRD}:{S_VSRD+3}], {so} offen offset:{imm} {flags}")
    def vs_load(r):
        so = f"s{S_OFFA}" if r < 2 else f"s{S_OFFB}"
        imm = (r & 1) * 3072 + 256
        a(f"buffer_load_dwordx4 {vr(V_VS + r*4)}, v{V_VSOFF}, s[{S_VSRD}:{S_VSRD+3}], {so} offen offset:{imm} {flags}")

    for seg in range(3):
        a(f"global_load_dwordx4 {vr(V_Q + seg*4)}, v{V_T3}, s[4:5] offset:{seg*128}")
    for n in range(4): k_loads(n)
    for r in range(8): vm_load(r)
    for r in range(4): vs_load(r)

    a(f"s_mov_b32 s{S_C}, 0x{f2u(C_SCALE):08x}")
    a(f"s_mov_b32 s{S_SEL0}, 0x05040100")
    a(f"s_mov_b32 s{S_SEL1}, 0x07060302")
    a(f"s_mov_b32 s{S_CNT}, {NIT}")
    a(f"v_bfe_u32 v{V_T0}, v{V_LANE}, 3, 1")
    a(f"v_mul_u32_u24 v{V_T0}, 2, v{V_T0}")
    a(f"s_mov_b32 s27, 0x01010101")
    a(f"v_mul_lo_u32 v{V_T0}, v{V_T0}, s27")
    a(f"v_add_u32 v{V_SELP}, 0x05040100, v{V_T0}")
    a(f"v_mov_b32 v{V_M}, 0xff7fffff")
    a(f"v_mov_b32 v{V_T1}, 0x7f800000")
    a(f"v_and_b32 v{V_T0}, 4, v{V_LANE}")
    a(f"v_cmp_ne_u32 vcc, 0, v{V_T0}")
    a(f"v_mov_b32 v{V_L}, 0")
    a(f"s_nop 0")
    a(f"v_cndmask_b32 v{V_M}, v{V_M}, v{V_T1}, vcc")
    a(f"v_mul_f32 v{V_MC}, s{S_C}, v{V_M}")
    for i in range(64):
        a(f"v_mov_b32 v{V_O+i}, 0")

    a(".p2align 6")
    a.label("L_loop")
    a(f"s_add_u32 s{S_OFFA}, s{S_OFFA}, {STEP}")
    a(f"s_cmp_ge_u32 s{S_OFFA}, {HEAD_BYTES}")
    a(f"s_cselect_b32 s27, {HEAD_BYTES}, 0")
    a(f"s_sub_u32 s{S_OFFA}, s{S_OFFA}, s27")
    a(f"s_add_u32 s{S_OFFB}, s{S_OFFA}, 6144")
    a(f"s_cmp_eq_u32 s{S_CNT}, 1")
    a(f"s_cselect_b32 s{S_KSRD+2}, 0, {HEAD_BYTES}")
    a(f"s_cselect_b32 s{S_VSRD+2}, 0, {HEAD_BYTES}")
    if not fine: a("s_waitcnt vmcnt(12)")
    for n in range(4):
        if fine: a("s_waitcnt vmcnt(21)")
        for seg in range(3):
            c = "0" if seg == 0 else vr(V_D + n*4)
            a(f"v_mfma_f32_16x16x32_bf16 {vr(V_D + n*4)}, {ar(A_K + (n*3+seg)*4)}, {vr(V_Q + seg*4)}, {c}")
        if fine: k_loads(n)
    if not fine:
        for n in range(4): k_loads(n)
    a("s_nop 4")
    for n in range(4):
        for m in range(2):
            d = V_D + n*4 + 2*m
            a(f"v_add_f32_dpp v{d}, v{d+1}, v{d} row_half_mirror row_mask:0xf bank_mask:0xf")
    S = [V_D + n*4 + 2*m for n in range(4) for m in range(2)]
    a(f"v_max3_f32 v{V_T0}, v{S[0]}, v{S[1]}, v{S[2]}")
    a(f"v_max3_f32 v{V_T1}, v{S[3]}, v{S[4]}, v{S[5]}")
    a(f"v_max3_f32 v{V_T0}, v{V_T0}, v{S[6]}, v{S[7]}")
    a(f"v_max_f32 v{V_T0}, v{V_T0}, v{V_T1}")
    a(f"v_cmp_gt_f32 vcc, v{V_T0}, v{V_M}")
    a(f"s_cbranch_vccnz L_rescale")
    a.label("L_back")
    for i in range(8):
        a(f"v_fma_f32 v{V_P+i}, v{S[i]}, s{S_C}, -v{V_MC}")
    for i in range(8):
        a(f"v_exp_f32 v{V_P+i}, v{V_P+i}")
    a("s_nop 0")
    for n in range(4):
        a(f"v_cvt_pk_bf16_f32 v{V_PK+n}, v{V_P+2*n}, v{V_P+2*n+1}")
    a(f"v_add_f32 v{V_T0}, v{V_P+0}, v{V_P+1}")
    a(f"v_add_f32 v{V_T1}, v{V_P+2}, v{V_P+3}")
    a(f"v_add_f32 v{V_T2}, v{V_P+4}, v{V_P+5}")
    a(f"v_add_f32 v{V_T3}, v{V_P+6}, v{V_P+7}")
    a(f"v_perm_b32 v{V_PP}, v{V_PK+1}, v{V_PK+0}, v{V_SELP}")
    a(f"v_perm_b32 v{V_PP+1}, v{V_PK+3}, v{V_PK+2}, v{V_SELP}")
    a(f"v_add_f32 v{V_T0}, v{V_T0}, v{V_T1}")
    a(f"v_add_f32 v{V_T2}, v{V_T2}, v{V_T3}")
    a(f"v_add_f32 v{V_L}, v{V_L}, v{V_T0}")
    a(f"v_add_f32 v{V_L}, v{V_L}, v{V_T2}")
    if not fine: a("s_waitcnt vmcnt(12)")
    for rp in range(4):
        if fine: a("s_waitcnt vmcnt(22)")
        for dp in range(4):
            lo = V_VM + (2*rp)*4 + dp
            hi = V_VM + (2*rp+1)*4 + dp
            a(f"v_perm_b32 v{V_VT + (2*dp)*4 + rp}, v{hi}, v{lo}, s{S_SEL0}")
            a(f"v_perm_b32 v{V_VT + (2*dp+1)*4 + rp}, v{hi}, v{lo}, s{S_SEL1}")
        if fine:
            vm_load(2*rp); vm_load(2*rp+1)
    for rp in range(2):
        if fine: a("s_waitcnt vmcnt(22)")
        for dp in range(4):
            lo = V_VS + (2*rp)*4 + dp
            hi = V_VS + (2*rp+1)*4 + dp
            a(f"v_perm_b32 v{V_VT2 + (2*dp)*2 + rp}, v{hi}, v{lo}, s{S_SEL0}")
            a(f"v_perm_b32 v{V_VT2 + (2*dp+1)*2 + rp}, v{hi}, v{lo}, s{S_SEL1}")
        if fine:
            vs_load(2*rp); vs_load(2*rp+1)
    if not fine:
        for r in range(8): vm_load(r)
        for r in range(4): vs_load(r)
    for t in range(8):
        a(f"v_mfma_f32_16x16x32_bf16 {vr(V_O + t*4)}, {vr(V_VT + t*4)}, {vr(V_PK)}, {vr(V_O + t*4)}")
    for t in range(8):
        a(f"v_mfma_f32_16x16x16_bf16 {vr(V_O2 + t*4)}, {vr(V_VT2 + t*2, 2)}, {vr(V_PP, 2)}, {vr(V_O2 + t*4)}")
    a(f"s_sub_u32 s{S_CNT}, s{S_CNT}, 1")
    a(f"s_cmp_lg_u32 s{S_CNT}, 0")
    a("s_cbranch_scc1 L_loop")

    WS = 4096 + 64
    QS = 1024
    a(f"v_mov_b32 v{V_T0}, v{V_L}")
    a("s_nop 1")
    a(f"v_permlane16_swap_b32 v{V_T0}, v{V_L}")
    a("s_nop 1")
    a(f"v_add_f32 v{V_L}, v{V_L}, v{V_T0}")
    a(f"v_mov_b32 v{V_T0}, v{V_L}")
    a("s_nop 1")
    a(f"v_permlane32_swap_b32 v{V_T0}, v{V_L}")
    a("s_nop 1")
    a(f"v_add_f32 v{V_MC}, v{V_L}, v{V_T0}")
    a(f"v_mov_b32 v{V_T0}, v{V_M}")
    a(f"v_mov_b32 v{V_T1}, v{V_MC}")
    a(f"v_and_b32 v{V_T2}, 3, v{V_LANE}")
    a(f"v_lshlrev_b32 v{V_T2}, 10, v{V_T2}")
    a(f"v_lshrrev_b32 v{V_T3}, 4, v{V_LANE}")
    a(f"v_lshl_add_u32 v{V_T2}, v{V_T3}, 7, v{V_T2}")
    a(f"s_mul_i32 s27, s{S_WAVE}, {WS}")
    a(f"v_add_u32 v{V_T2}, s27, v{V_T2}")
    a(f"v_and_b32 v{V_T3}, 3, v{V_LANE}")
    a(f"v_lshlrev_b32 v{V_T3}, 3, v{V_T3}")
    a(f"v_add_u32 v{V_T3}, s27, v{V_T3}")
    a("s_mov_b32 exec_lo, 0x000f000f")
    a("s_mov_b32 exec_hi, 0x000f000f")
    for t in range(8):
        a(f"ds_write_b128 v{V_T2}, {vr(V_O + t*4)} offset:{t*16}")
    a("s_mov_b32 exec_hi, 0x0f000f00")
    for t in range(8):
        a(f"ds_write_b128 v{V_T2}, {vr(V_O2 + t*4)} offset:{512 + t*16}")
    a("s_mov_b32 exec_lo, 0x0000000f")
    a("s_mov_b32 exec_hi, 0")
    a(f"ds_write_b64 v{V_T3}, v[{V_T0}:{V_T1}] offset:4096")
    a("s_mov_b64 exec, -1")
    a("s_waitcnt lgkmcnt(0)")
    a("s_barrier")
    a(f"s_cmp_eq_u32 s{S_WAVE}, 3")
    a("s_cbranch_scc1 L_fin")
    R_Q, R_RHO, R_A, R_ML, R_OUT = 20, 21, 22, 23, 24
    a(f"s_cmp_eq_u32 s{S_WAVE}, 2")
    a("s_cbranch_scc1 L_rd2")
    a(f"v_lshrrev_b32 v{R_Q}, 5, v{V_LANE}")
    a(f"s_lshl_b32 s27, s{S_WAVE}, 1")
    a(f"v_add_u32 v{R_Q}, s27, v{R_Q}")
    a(f"v_bfe_u32 v{R_RHO}, v{V_LANE}, 3, 2")
    a(f"v_lshlrev_b32 v{R_OUT}, 6, v{R_RHO}")
    a(f"v_lshlrev_b32 v{R_A}, 7, v{R_RHO}")
    a("s_branch L_rdc")
    a.label("L_rd2")
    a(f"v_lshrrev_b32 v{R_Q}, 4, v{V_LANE}")
    a(f"v_bfe_u32 v{R_RHO}, v{V_LANE}, 3, 1")
    a(f"v_lshlrev_b32 v{R_OUT}, 6, v{R_RHO}")
    a(f"v_add_u32 v{R_OUT}, 256, v{R_OUT}")
    a(f"v_lshlrev_b32 v{R_A}, 7, v{R_RHO}")
    a(f"v_add_u32 v{R_A}, 512, v{R_A}")
    a.label("L_rdc")
    a(f"v_and_b32 v{V_T0}, 7, v{V_LANE}")
    a(f"v_lshl_add_u32 v{R_A}, v{V_T0}, 4, v{R_A}")
    a(f"v_lshl_add_u32 v{R_A}, v{R_Q}, 10, v{R_A}")
    a(f"v_lshlrev_b32 v{R_ML}, 3, v{R_Q}")
    a(f"v_lshl_add_u32 v{R_OUT}, v{V_T0}, 1, v{R_OUT}")
    a(f"v_mul_u32_u24 v{V_T1}, 384, v{R_Q}")
    a(f"v_add_u32 v{R_OUT}, v{R_OUT}, v{V_T1}")
    X = 32
    Y = 104
    ML = 120
    for w in range(4):
        a(f"ds_read_b64 v[{ML+2*w}:{ML+2*w+1}], v{R_ML} offset:{w*WS + 4096}")
    for w in range(4):
        a(f"ds_read_b128 {vr(X+4*w)}, v{R_A} offset:{w*WS}")
    a(f"s_cmp_eq_u32 s{S_WAVE}, 2")
    a("s_cbranch_scc0 L_noy")
    for w in range(4):
        a(f"ds_read_b128 {vr(Y+4*w)}, v{R_A} offset:{w*WS + 256}")
    a("s_waitcnt lgkmcnt(0)")
    for w in range(4):
        for r in range(4):
            a(f"v_add_f32 v{X+4*w+r}, v{X+4*w+r}, v{Y+4*w+r}")
    a.label("L_noy")
    a("s_waitcnt lgkmcnt(0)")
    a(f"v_max3_f32 v{V_T0}, v{ML}, v{ML+2}, v{ML+4}")
    a(f"v_max_f32 v{V_T0}, v{V_T0}, v{ML+6}")
    for w in range(4):
        a(f"v_sub_f32 v{ML+2*w}, v{ML+2*w}, v{V_T0}")
    for w in range(4):
        a(f"v_mul_f32 v{ML+2*w}, s{S_C}, v{ML+2*w}")
    for w in range(4):
        a(f"v_exp_f32 v{ML+2*w}, v{ML+2*w}")
    a("s_nop 0")
    a(f"v_mul_f32 v{V_T1}, v{ML}, v{ML+1}")
    for w in range(1, 4):
        a(f"v_fmac_f32 v{V_T1}, v{ML+2*w}, v{ML+2*w+1}")
    a(f"v_rcp_f32 v{V_T1}, v{V_T1}")
    a("s_nop 0")
    for w in range(4):
        a(f"v_mul_f32 v{ML+2*w}, v{ML+2*w}, v{V_T1}")
    for r in range(4):
        a(f"v_mul_f32 v{Y+r}, v{ML}, v{X+r}")
    for w in range(1, 4):
        for r in range(4):
            a(f"v_fmac_f32 v{Y+r}, v{ML+2*w}, v{X+4*w+r}")
    a(f"v_cvt_pk_bf16_f32 v{Y+4}, v{Y}, v{Y+1}")
    a(f"v_cvt_pk_bf16_f32 v{Y+5}, v{Y+2}, v{Y+3}")
    a(f"global_store_short v{R_OUT}, v{Y+4}, s[10:11]")
    a(f"global_store_short_d16_hi v{R_OUT}, v{Y+4}, s[10:11] offset:16")
    a(f"global_store_short v{R_OUT}, v{Y+5}, s[10:11] offset:32")
    a(f"global_store_short_d16_hi v{R_OUT}, v{Y+5}, s[10:11] offset:48")
    a.label("L_fin")
    if stamps:
        a("s_waitcnt vmcnt(0)")
        a("s_memrealtime s[42:43]")
        a("s_waitcnt lgkmcnt(0)")
        a(f"s_lshl_b32 s27, s2, 2\n    s_add_u32 s27, s27, s{S_WAVE}\n    s_lshl_b32 s27, s27, 4")
        a("s_getreg_b32 s28, hwreg(HW_REG_XCC_ID)\n    s_and_b32 s28, s28, 0xf\n    s_lshl_b32 s28, s28, 24\n    s_or_b32 s43, s43, s28")
        a("v_mov_b32 v0, s27\n    v_mov_b32 v4, s40\n    v_mov_b32 v5, s41\n    v_mov_b32 v6, s42\n    v_mov_b32 v7, s43")
        a("s_mov_b64 exec, 1\n    global_store_dwordx4 v0, v[4:7], s[44:45]")
    a.label("L_done")
    a("s_endpgm")

    a.label("L_rescale")
    a(f"v_max_f32 v{V_T0}, v{V_T0}, v{V_M}")
    a(f"v_mov_b32 v{V_T1}, v{V_T0}")
    a("s_nop 1")
    a(f"v_permlane16_swap_b32 v{V_T1}, v{V_T0}")
    a("s_nop 1")
    a(f"v_max_f32 v{V_T0}, v{V_T0}, v{V_T1}")
    a(f"v_mov_b32 v{V_T1}, v{V_T0}")
    a("s_nop 1")
    a(f"v_permlane32_swap_b32 v{V_T1}, v{V_T0}")
    a("s_nop 1")
    a(f"v_max_f32 v{V_T0}, v{V_T0}, v{V_T1}")
    a(f"v_sub_f32 v{V_T1}, v{V_M}, v{V_T0}")
    a(f"v_mul_f32 v{V_T1}, s{S_C}, v{V_T1}")
    a(f"v_exp_f32 v{V_T1}, v{V_T1}")
    a(f"v_mov_b32 v{V_M}, v{V_T0}")
    a(f"v_mul_f32 v{V_MC}, s{S_C}, v{V_T0}")
    a(f"v_mul_f32 v{V_L}, v{V_L}, v{V_T1}")
    for i in range(64):
        a(f"v_mul_f32 v{V_O+i}, v{V_T1}, v{V_O+i}")
    a("s_branch L_back")

    lds = NW * WS
    nfv = NVGPR + NAGPR
    kd = f""".section .rodata,"a"
.p2align 6
.amdhsa_kernel {name}
  .amdhsa_next_free_vgpr {nfv}
  .amdhsa_next_free_sgpr 64
  .amdhsa_accum_offset {NVGPR}
  .amdhsa_group_segment_fixed_size 0
  .amdhsa_kernarg_size 48
  .amdhsa_user_sgpr_count 2
  .amdhsa_user_sgpr_kernarg_segment_ptr 1
  .amdhsa_system_sgpr_workgroup_id_x 1
  .amdhsa_float_denorm_mode_32 3
.end_amdhsa_kernel
"""
    body = a.text()
    return body, kd, lds, nfv

HEADER = """; Kernarg layout for this problem (48 bytes, ptrs only, base s[0:1]):
"""

def write_kernel(path, **kw):
    name = "standalone__mha_softmax__sampling_kernel"
    body, kd, lds, nfv = gen(name=name, **kw)
    with open(path, "w") as f:
        f.write(HEADER)
        f.write(f"; @launch grid=(256,1,1) block=(256,1,1) lds={lds}\n")
        f.write('.amdgcn_target "amdgcn-amd-amdhsa--gfx950"\n.text\n')
        f.write(f".globl {name}\n.p2align 8\n.type {name},@function\n")
        f.write(body)
        f.write(kd)

if __name__ == "__main__":
    out = sys.argv[1] if len(sys.argv) > 1 else "standalone__mha_softmax__sampling.s"
    write_kernel(out)
```

```python
import sys, struct, math

HEAD_BYTES = 4096 * 384
GROUP_BYTES = 32 * 384

def f2u(x):
    return struct.unpack("<I", struct.pack("<f", x))[0]
C_SCALE = math.log2(math.e) / math.sqrt(192.0)

class Asm:
    def __init__(self): self.l = []
    def __call__(self, s): self.l.append("    " + s)
    def label(self, s): self.l.append(s + ":")
    def c(self, s): self.l.append("    ; " + s)
    def text(self): return "\n".join(self.l) + "\n"

def gen(name="standalone__mha_softmax__sampling_kernel", Wn=6, T=2, P0=24, stagger=7, flags="nt", stamps=False,
        tl=False, pat=None, Wb=None, duty=None, ab=None, vtouch=0, pv_early=False, fine_ab=None, hmap='rr', fake_nfv=None, fake_lds=None, NW=4, fb=None, magnify=None, warm=0, fakelin='', peel=False, tailW=None, qorder='mid'):
    STEP = NW * GROUP_BYTES
    NIT = HEAD_BYTES // STEP
    D = 24
    a = Asm()
    V_KOFF, V_VMOFF, V_VSOFF, V_SELP = 1, 2, 3, 4
    V_M, V_MC, V_L = 5, 6, 7
    V_T0, V_T1, V_T2, V_T3 = 8, 9, 10, 11
    V_PK, V_PP, V_LANE = 12, 16, 18
    V_Q, V_D = 20, 32
    if NW == 8:
        assert pv_early
        PREG = [V_D + n*4 + 2*m + 1 for n in range(4) for m in range(2)]
        V_VM, V_VS, V_VT = 48, 80, 96
        V_VT2 = V_VT
        V_O, V_O2 = 128, 160
        E_W, E_ML, R_A, R_ML, R_OUT = 192, 193, 194, 195, 196
        R_A2, R_ML2, R_OUT2 = 197, 198, 199
        V_PR, V_PADDR, V_SLOT, V_WARM = 200, 201, 202, 203
        NVGPR = 204
    else:
        PREG = [48 + i for i in range(8)]
        V_VM, V_VS, V_VT, V_VT2 = 56, 88, 104, 136
        V_O, V_O2 = 152, 184
        E_W, E_ML, R_A, R_ML, R_OUT = 216, 217, 218, 219, 220
        R_A2, R_ML2, R_OUT2 = 221, 222, 223
        V_PR, V_PADDR, V_SLOT, V_WARM = 224, 225, 226, 227
        NVGPR = 228 if fb else 224
    V_LIN, V_LIN2 = 221, 222
    A_K, NAGPR = 0, 48
    S_KSRD, S_VSRD, S_KSRDN, S_VSRDN = 12, 16, 32, 36
    S_CNT, S_C, S_SEL0, S_SEL1 = 22, 24, 25, 26
    S_WAVE = 3
    S_CUR, S_NXT = 48, 52
    QS, WS = 1040, 4*1040 + 64
    def vr(b, n=4): return f"v[{b}:{b+n-1}]"
    def ar(b, n=4): return f"a[{b}:{b+n-1}]"
    def st(i):
        if tl: a(f"s_memrealtime s[{64+2*i}:{65+2*i}]")

    LOADS = []
    for n in range(4):
        for seg in range(3):
            LOADS.append((ar(A_K + (n*3+seg)*4), V_KOFF, 0, n >> 1, (n & 1)*3072 + seg*128))
    for r in range(8):
        n = r >> 1
        LOADS.append((vr(V_VM + r*4), V_VMOFF, 1, n >> 1, (n & 1)*3072 + (r & 1)*384))
    for r in range(4):
        LOADS.append((vr(V_VS + r*4), V_VSOFF, 1, r >> 1, (r & 1)*3072 + 256))
    if fakelin:
        NEWL = []
        for idx, (dst, voff, isv, b, imm) in enumerate(LOADS):
            if (isv and 'v' in fakelin) or ((not isv) and 'k' in fakelin):
                i = idx % 12
                NEWL.append((dst, V_LIN, isv, i // 6, (i % 6) * 1024 if (i % 6) < 4 else None, i))
            else:
                NEWL.append((dst, voff, isv, b, imm, None))
        LOADS2 = []
        for (dst, voff, isv, b, imm, i) in NEWL:
            if i is None: LOADS2.append((dst, voff, isv, b, imm))
            else:
                off = i * 1024
                bb = 0 if off < 6144 else 1
                rel = off - bb * 6144
                if rel < 4096: LOADS2.append((dst, V_LIN, isv, bb, rel))
                else: LOADS2.append((dst, V_LIN2, isv, bb, rel - 4096))
        LOADS[:] = LOADS2
    def issue(z):
        nxt = z >= 24
        dst, voff, isv, b, imm = LOADS[z % 24]
        srd = (S_VSRDN if isv else S_KSRDN) if nxt else (S_VSRD if isv else S_KSRD)
        so = (S_NXT if nxt else S_CUR) + b
        a(f"buffer_load_dwordx4 {dst}, v{voff}, s[{srd}:{srd+3}], s{so} offen offset:{imm} {flags}")
    def win(z):
        return Wn if pat is None else pat[z % len(pat)]

    a.label(name)
    st(0)
    a("s_load_dwordx8 s[4:11], s[0:1], 0")
    a("s_cmp_ge_u32 s2, 256")
    a("s_cbranch_scc1 L_done")
    if fb:
        a("s_load_dwordx2 s[56:57], s[0:1], 32")
    if magnify:
        a("s_memrealtime s[40:41]")
    if stamps:
        a("s_load_dwordx2 s[44:45], s[0:1], 40")
        a("s_memrealtime s[40:41]")
    a(f"v_lshrrev_b32 v{V_T0}, 6, v0")
    a(f"v_and_b32 v{V_LANE}, 63, v0")
    a(f"v_readfirstlane_b32 s{S_WAVE}, v{V_T0}")
    a(f"v_and_b32 v{V_T1}, 15, v0")
    a(f"v_bfe_u32 v{V_T2}, v0, 4, 2")
    a.c("K voffset = (i16>>1)*384 + (2g + (i16&1))*16")
    a(f"v_lshrrev_b32 v{V_T0}, 1, v{V_T1}")
    a(f"v_mul_u32_u24 v{V_KOFF}, 384, v{V_T0}")
    a(f"v_and_b32 v{V_T0}, 1, v{V_T1}")
    a(f"v_lshl_add_u32 v{V_T0}, v{V_T2}, 1, v{V_T0}")
    a(f"v_lshl_add_u32 v{V_KOFF}, v{V_T0}, 4, v{V_KOFF}")
    if hmap == 'rr':
        a("s_mov_b32 s23, s2")
    elif hmap == 'blk':
        a("s_and_b32 s23, s2, 7")
        a("s_lshl_b32 s23, s23, 5")
        a("s_lshr_b32 s28, s2, 3")
        a("s_add_u32 s23, s23, s28")
    a.c("first group of this wave (start rotated per head)")
    if fine_ab is not None:
        if fine_ab == 'table':
            a("s_waitcnt lgkmcnt(0)")
            a("s_lshl_b32 s27, s2, 2")
            a("s_add_u32 s27, s27, 0x70000")
            a("s_load_dword s60, s[44:45], s27")
            a("s_waitcnt lgkmcnt(0)")
            a(f"s_add_u32 s27, s60, s{S_WAVE}")
            a(f"s_and_b32 s27, s27, 127")
            a(f"s_mul_i32 s{S_CUR}, s27, {GROUP_BYTES}")
        if fine_ab == 'dyn':
            a("s_waitcnt lgkmcnt(0)")
            a("s_load_dwordx2 s[60:61], s[44:45], 0x70000")
            a("s_waitcnt lgkmcnt(0)")
            fa_, fb_ = "s60", "s61"
        elif fine_ab != 'table':
            fa_, fb_ = fine_ab
        if fine_ab != 'table':
            a(f"s_and_b32 s27, s2, 7")
            a(f"s_mul_i32 s27, s27, {fa_}")
            a(f"s_lshr_b32 s28, s2, 3")
            a(f"s_mul_i32 s28, s28, {fb_}")
            a(f"s_add_u32 s27, s27, s28")
            a(f"s_add_u32 s27, s27, s{S_WAVE}")
            a(f"s_and_b32 s27, s27, 127")
            a(f"s_mul_i32 s{S_CUR}, s27, {GROUP_BYTES}")
    else:
        if ab is None:
            a(f"s_mul_i32 s27, s2, {stagger}")
        elif ab == 'dyn':
            a("s_waitcnt lgkmcnt(0)")
            a("s_load_dwordx2 s[60:61], s[44:45], 0x70000")
            a("s_waitcnt lgkmcnt(0)")
            a(f"s_and_b32 s27, s2, 7")
            a(f"s_mul_i32 s27, s27, s60")
            a(f"s_lshr_b32 s28, s2, 3")
            a(f"s_mul_i32 s28, s28, s61")
            a(f"s_add_u32 s27, s27, s28")
        else:
            a(f"s_and_b32 s27, s2, 7")
            a(f"s_mul_i32 s27, s27, {ab[0]}")
            a(f"s_lshr_b32 s28, s2, 3")
            a(f"s_mul_i32 s28, s28, {ab[1]}")
            a(f"s_add_u32 s27, s27, s28")
        a(f"s_and_b32 s27, s27, {NIT-1}")
        a(f"s_mul_i32 s27, s27, {STEP}")
        a(f"s_mul_i32 s28, s{S_WAVE}, {GROUP_BYTES}")
        a(f"s_add_u32 s{S_CUR}, s27, s28")
    a(f"s_add_u32 s{S_CUR+1}, s{S_CUR}, 6144")
    a(f"s_mul_i32 s27, s23, {HEAD_BYTES}")
    a(f"s_mov_b32 s{S_KSRD+2}, {HEAD_BYTES}")
    a(f"s_mov_b32 s{S_KSRD+3}, 0x20000")
    a(f"s_mov_b32 s{S_VSRD+2}, {HEAD_BYTES}")
    a(f"s_mov_b32 s{S_VSRD+3}, 0x20000")
    a.c("V main voffset = i16*16 + g*768 ; V tail voffset = (i16&7)*16 + (i16>>3)*384 + g*768 (+256 imm)")
    a(f"v_mul_u32_u24 v{V_T3}, 768, v{V_T2}")
    a(f"v_lshl_add_u32 v{V_VMOFF}, v{V_T1}, 4, v{V_T3}")
    a(f"v_and_b32 v{V_T0}, 7, v{V_T1}")
    a(f"v_lshl_add_u32 v{V_VSOFF}, v{V_T0}, 4, v{V_T3}")
    a(f"v_lshrrev_b32 v{V_T0}, 3, v{V_T1}")
    a(f"v_mul_u32_u24 v{V_T0}, 384, v{V_T0}")
    a(f"v_add_u32 v{V_VSOFF}, v{V_VSOFF}, v{V_T0}")
    if qorder == 'first':
        a(f"v_bfe_u32 v{V_T0}, v{V_T1}, 2, 1")
        a(f"v_and_b32 v{V_T3}, 3, v{V_T1}")
        a(f"v_mul_u32_u24 v{V_D}, 3, v{V_T0}")
        a(f"v_xor_b32 v{V_T3}, v{V_T3}, v{V_D}")
        a(f"v_mul_u32_u24 v{V_T3}, 384, v{V_T3}")
        a(f"v_lshl_add_u32 v{V_D}, v{V_T2}, 1, v{V_T0}")
        a(f"v_lshl_add_u32 v{V_T3}, v{V_D}, 4, v{V_T3}")
    if fakelin:
        a(f"v_lshlrev_b32 v{V_LIN}, 4, v{V_LANE}")
        a(f"v_add_u32 v{V_LIN2}, 4096, v{V_LIN}")
    a("s_waitcnt lgkmcnt(0)")
    a(f"s_add_u32 s{S_KSRD}, s6, s27")
    a(f"s_addc_u32 s{S_KSRD+1}, s7, 0")
    a(f"s_add_u32 s{S_VSRD}, s8, s27")
    a(f"s_addc_u32 s{S_VSRD+1}, s9, 0")
    def qaddr():
        a.c("Q' voffset: column j=i16: u=(j>>2)&1, q=(j&3)^(3u); off = q*384 + (2g+u)*16")
        a(f"v_bfe_u32 v{V_T0}, v{V_T1}, 2, 1")
        a(f"v_and_b32 v{V_T3}, 3, v{V_T1}")
        a(f"v_mul_u32_u24 v{V_D}, 3, v{V_T0}")
        a(f"v_xor_b32 v{V_T3}, v{V_T3}, v{V_D}")
        a(f"v_mul_u32_u24 v{V_T3}, 384, v{V_T3}")
        a(f"v_lshl_add_u32 v{V_D}, v{V_T2}, 1, v{V_T0}")
        a(f"v_lshl_add_u32 v{V_T3}, v{V_D}, 4, v{V_T3}")
    def qloads():
        a(f"s_mul_i32 s28, s23, 1536")
        a(f"s_add_u32 s4, s4, s28")
        a(f"s_addc_u32 s5, s5, 0")
        for seg in range(3):
            a(f"global_load_dwordx4 {vr(V_Q + seg*4)}, v{V_T3}, s[4:5] offset:{seg*128}")
    def vt():
        a("s_mov_b64 exec, 1")
        a(f"buffer_load_dword v{V_WARM}, v{V_VMOFF}, s[{S_VSRD}:{S_VSRD+3}], s{S_CUR} offen {flags}")
        a("s_mov_b64 exec, -1")
    nk0 = min(P0, 3)
    if qorder == 'mid':
        if vtouch == 1: vt()
        for z in range(nk0): issue(z)
        if vtouch == 2: vt()
        qaddr(); qloads()
        for z in range(nk0, P0): issue(z)
    elif qorder == 'first':
        qloads()
        for z in range(P0): issue(z)
    elif qorder == 'last':
        for z in range(P0): issue(z)
        qaddr(); qloads()
    elif qorder == 'midk':
        for z in range(12): issue(z)
        qaddr(); qloads()
        for z in range(12, P0): issue(z)
    if warm:
        a.c("pull the later code (tail loop, epilogue, rarely taken paths) into L2 while the first data is in flight")
        a("s_getpc_b64 s[58:59]")
        a.label("L_pc")
        a(f"s_cmp_eq_u32 s{S_WAVE}, {NW-1}")
        a("s_cbranch_scc0 L_nowarm")
        a(f"v_lshlrev_b32 v{V_D}, 7, v{V_LANE}")
        a(f"s_mov_b32 s27, L_codeend - L_pc - 4")
        for i in range(warm):
            if i > 0: a(f"v_add_u32 v{V_D}, 8192, v{V_D}")
            a(f"v_min_u32 v{V_D+1}, s27, v{V_D}")
            a(f"global_load_dword v{V_WARM}, v{V_D+1}, s[58:59]")
        a.label("L_nowarm")
    a(f"s_add_u32 s10, s10, s28")
    a(f"s_addc_u32 s11, s11, 0")
    for i in range(4):
        a(f"s_mov_b32 s{S_KSRDN+i}, s{S_KSRD+i}")
        a(f"s_mov_b32 s{S_VSRDN+i}, s{S_VSRD+i}")
    if Wb is not None:
        pack = 0
        for x in range(8): pack |= (duty[x] & 0xf) << (4*x)
        a("s_getreg_b32 s31, hwreg(HW_REG_XCC_ID)")
        a("s_and_b32 s31, s31, 7")
        a("s_lshl_b32 s31, s31, 2")
        a(f"s_lshr_b32 s31, 0x{pack:08x}, s31")
        a("s_and_b32 s31, s31, 15")
        a("s_mul_i32 s31, s31, 0x11111111")
    if fb:
        a.c("progress exchange inside the compute die: byte slot 32*xcc + (wg>>3) of d_debug, peers = the die's 32 bytes")
        a("s_getreg_b32 s27, hwreg(HW_REG_XCC_ID)")
        a("s_and_b32 s27, s27, 7")
        a("s_lshl_b32 s27, s27, 5")
        a("s_lshr_b32 s28, s2, 3")
        a("s_and_b32 s28, s28, 31")
        a("s_add_u32 s28, s28, s27")
        a(f"v_mov_b32 v{V_SLOT}, s28")
        a(f"v_and_b32 v{V_PADDR}, 7, v{V_LANE}")
        a(f"v_lshlrev_b32 v{V_PADDR}, 2, v{V_PADDR}")
        a(f"v_add_u32 v{V_PADDR}, s27, v{V_PADDR}")
        a(f"v_mov_b32 v{V_PR}, 0")
        if fb.get('biasx'):
            pack = 0
            for x in range(8): pack |= (fb['biasx'][x] & 15) << (4*x)
            a("s_lshr_b32 s63, s27, 3")
            a(f"s_lshr_b32 s63, 0x{pack:08x}, s63")
            a("s_and_b32 s63, s63, 15")
            a(f"s_add_u32 s63, s63, {32 + fb.get('bias', 16)}")
    a(f"s_mov_b32 s{S_C}, 0x{f2u(C_SCALE):08x}")
    a(f"s_mov_b32 s{S_SEL0}, 0x05040100")
    a(f"s_mov_b32 s{S_SEL1}, 0x07060302")
    a(f"s_mov_b32 s{S_CNT}, {NIT}")
    a.c("selP = sigma ? 0x07060302 : 0x05040100, sigma = bit 3 of the lane")
    a(f"v_bfe_u32 v{V_T0}, v{V_LANE}, 3, 1")
    a(f"v_mul_u32_u24 v{V_T0}, 2, v{V_T0}")
    a(f"s_mov_b32 s27, 0x01010101")
    a(f"v_mul_lo_u32 v{V_T0}, v{V_T0}, s27")
    a(f"v_add_u32 v{V_SELP}, 0x05040100, v{V_T0}")
    a.c("running max: -FLT_MAX in the live columns, +inf in the dead ones (their P is then 0)")
    a(f"v_mov_b32 v{V_M}, 0xff7fffff")
    a(f"v_mov_b32 v{V_T3}, 0x7f800000")
    a(f"v_and_b32 v{V_T0}, 4, v{V_LANE}")
    a(f"v_cmp_ne_u32 vcc, 0, v{V_T0}")
    a(f"v_mov_b32 v{V_L}, 0")
    a(f"s_nop 0")
    a(f"v_cndmask_b32 v{V_M}, v{V_M}, v{V_T3}, vcc")
    a(f"v_mul_f32 v{V_MC}, s{S_C}, v{V_M}")
    a.c("epilogue addresses: writer  wave*WS + q*QS + g*128 ; (m,l) wave*WS + 4*QS + q*8")
    a(f"v_and_b32 v{V_T0}, 3, v{V_LANE}")
    a(f"s_mul_i32 s27, s{S_WAVE}, {WS}")
    a(f"v_mul_u32_u24 v{E_W}, {QS}, v{V_T0}")
    a(f"v_lshl_add_u32 v{E_W}, v{V_T2}, 7, v{E_W}")
    a(f"v_add_u32 v{E_W}, s27, v{E_W}")
    a(f"v_lshlrev_b32 v{E_ML}, 3, v{V_T0}")
    a(f"v_add_u32 v{E_ML}, s27, v{E_ML}")
    if NW >= 4:
        a.c("reader: waves 0,1: q = 2*wave + (lane>>5), rho = (lane>>3)&3 ; wave 2: q = lane>>4, rho = 4 + ((lane>>3)&1) ; t = lane&7")
        a(f"s_lshl_b32 s30, s{S_WAVE}, 1")
        a(f"s_cmp_eq_u32 s{S_WAVE}, 2")
        a(f"s_cselect_b32 s27, 4, 5")
        a(f"s_cselect_b32 s28, 1, 3")
        a(f"s_cselect_b32 s29, 4, 0")
        a(f"s_cselect_b32 s30, 0, s30")
        a(f"v_lshrrev_b32 v{V_T0}, s27, v{V_LANE}")
        a(f"v_add_u32 v{V_T0}, s30, v{V_T0}")
        a(f"v_lshrrev_b32 v{V_T1}, 3, v{V_LANE}")
        a(f"v_and_b32 v{V_T1}, s28, v{V_T1}")
        a(f"v_add_u32 v{V_T1}, s29, v{V_T1}")
        a(f"v_and_b32 v{V_T3}, 7, v{V_LANE}")
        a(f"v_mul_u32_u24 v{R_A}, {QS}, v{V_T0}")
        a(f"v_lshl_add_u32 v{R_A}, v{V_T1}, 7, v{R_A}")
        a(f"v_lshl_add_u32 v{R_A}, v{V_T3}, 4, v{R_A}")
        a(f"v_lshlrev_b32 v{R_ML}, 3, v{V_T0}")
        a(f"v_mul_u32_u24 v{R_OUT}, 384, v{V_T0}")
        a(f"v_lshl_add_u32 v{R_OUT}, v{V_T1}, 6, v{R_OUT}")
        a(f"v_lshl_add_u32 v{R_OUT}, v{V_T3}, 1, v{R_OUT}")
    else:
        a.c("reader (2 waves): pass A: q = 2*wave + (lane>>5), rho = (lane>>3)&3 ; pass B (lanes 0..31): q = 2*wave + (lane>>4), rho = 4 + ((lane>>3)&1)")
        a(f"s_lshl_b32 s30, s{S_WAVE}, 1")
        a(f"v_and_b32 v{V_T3}, 7, v{V_LANE}")
        for (ra, rml, rout, qs, rm, rb) in ((R_A, R_ML, R_OUT, 5, 3, 0), (R_A2, R_ML2, R_OUT2, 4, 1, 4)):
            a(f"v_lshrrev_b32 v{V_T0}, {qs}, v{V_LANE}")
            a(f"v_add_u32 v{V_T0}, s30, v{V_T0}")
            a(f"v_and_b32 v{V_T0}, 3, v{V_T0}")
            a(f"v_lshrrev_b32 v{V_T1}, 3, v{V_LANE}")
            a(f"v_and_b32 v{V_T1}, {rm}, v{V_T1}")
            a(f"v_add_u32 v{V_T1}, {rb}, v{V_T1}")
            a(f"v_mul_u32_u24 v{ra}, {QS}, v{V_T0}")
            a(f"v_lshl_add_u32 v{ra}, v{V_T1}, 7, v{ra}")
            a(f"v_lshl_add_u32 v{ra}, v{V_T3}, 4, v{ra}")
            a(f"v_lshlrev_b32 v{rml}, 3, v{V_T0}")
            a(f"v_mul_u32_u24 v{rout}, 384, v{V_T0}")
            a(f"v_lshl_add_u32 v{rout}, v{V_T1}, 6, v{rout}")
            a(f"v_lshl_add_u32 v{rout}, v{V_T3}, 1, v{rout}")
    for i in range(64):
        a(f"v_mov_b32 v{V_O+i}, 0")
    if stamps: a("v_mov_b32 v19, 0")
    for z in range(P0, D):
        a(f"s_waitcnt vmcnt({win(z)-1})")
        issue(z)
    if qorder == 'last':
        a("s_waitcnt vmcnt(0)")
    if qorder == 'midk':
        a("s_waitcnt vmcnt(12)")
    if tl:
        a("s_waitcnt vmcnt(21)")
        st(2)

    def body(sfx, narrow, wn=None, bpat=None, last=False):
        W = D
        def iss(z):
            if last: return
            if narrow:
                w = bpat[z % len(bpat)] if bpat else (wn if wn else win(z))
                a(f"s_waitcnt vmcnt({w-1})")
            issue(z)
        a.label(f"L_loop{sfx}")
        if not last:
            a(f"s_add_u32 s{S_NXT}, s{S_CUR}, {STEP}")
            a(f"s_cmp_ge_u32 s{S_NXT}, {HEAD_BYTES}")
            a(f"s_cselect_b32 s27, {HEAD_BYTES}, 0")
            a(f"s_sub_u32 s{S_NXT}, s{S_NXT}, s27")
            a(f"s_add_u32 s{S_NXT+1}, s{S_NXT}, 6144")
            if not peel:
                a(f"s_cmp_eq_u32 s{S_CNT}, 1")
                a(f"s_cselect_b32 s{S_KSRDN+2}, 0, {HEAD_BYTES}")
                a(f"s_cselect_b32 s{S_VSRDN+2}, 0, {HEAD_BYTES}")
        a.c("S^T tiles: 8 keys x 192 dims each (3 MFMAs); the freed K registers are reloaded for the next group")
        for n in range(4):
            a(f"s_waitcnt vmcnt({(W-3) if not last else (W-3-3*n)})")
            for seg in range(3):
                c = "0" if seg == 0 else vr(V_D + n*4)
                a(f"v_mfma_f32_16x16x32_bf16 {vr(V_D + n*4)}, {ar(A_K + (n*3+seg)*4)}, {vr(V_Q + seg*4)}, {c}")
            for z in range(3*n, 3*n+3): iss(z + W)
        a.c("add the two chunk halves: lane (q, g) gets the scores of keys 8n + 2g + m in v32/34, v36/38, ...")
        a("s_nop 4" if not last else "s_nop 7")
        for n in range(4):
            for m in range(2):
                d = V_D + n*4 + 2*m
                a(f"v_add_f32_dpp v{d}, v{d+1}, v{d} row_half_mirror row_mask:0xf bank_mask:0xf")
        S = [V_D + n*4 + 2*m for n in range(4) for m in range(2)]
        a.c("running max check (dead columns hold +inf and never fire)")
        a(f"v_max3_f32 v{V_T0}, v{S[0]}, v{S[1]}, v{S[2]}")
        a(f"v_max3_f32 v{V_T1}, v{S[3]}, v{S[4]}, v{S[5]}")
        a(f"v_max3_f32 v{V_T0}, v{V_T0}, v{S[6]}, v{S[7]}")
        a(f"v_max_f32 v{V_T0}, v{V_T0}, v{V_T1}")
        a(f"v_cmp_gt_f32 vcc, v{V_T0}, v{V_M}")
        a(f"s_cbranch_vccnz L_rescale{sfx}")
        a.label(f"L_back{sfx}")
        a.c("P = exp2(S*c - m*c), row sum, bf16 packing (second packing for the d >= 128 part)")
        for i in range(8):
            a(f"v_fma_f32 v{PREG[i]}, v{S[i]}, s{S_C}, -v{V_MC}")
        for i in range(8):
            a(f"v_exp_f32 v{PREG[i]}, v{PREG[i]}")
        a("s_nop 0")
        for n in range(4):
            a(f"v_cvt_pk_bf16_f32 v{V_PK+n}, v{PREG[2*n]}, v{PREG[2*n+1]}")
        a(f"v_add_f32 v{V_T0}, v{PREG[0]}, v{PREG[1]}")
        a(f"v_add_f32 v{V_T1}, v{PREG[2]}, v{PREG[3]}")
        a(f"v_add_f32 v{V_T2}, v{PREG[4]}, v{PREG[5]}")
        a(f"v_add_f32 v{V_T3}, v{PREG[6]}, v{PREG[7]}")
        a(f"v_perm_b32 v{V_PP}, v{V_PK+1}, v{V_PK+0}, v{V_SELP}")
        a(f"v_perm_b32 v{V_PP+1}, v{V_PK+3}, v{V_PK+2}, v{V_SELP}")
        a(f"v_add_f32 v{V_T0}, v{V_T0}, v{V_T1}")
        a(f"v_add_f32 v{V_T2}, v{V_T2}, v{V_T3}")
        a(f"v_add_f32 v{V_L}, v{V_L}, v{V_T0}")
        a(f"v_add_f32 v{V_L}, v{V_L}, v{V_T2}")
        a.c("V rows -> V^T fragments (in-lane 8x8 transposes), d 0..127")
        for rp in range(4):
            a(f"s_waitcnt vmcnt({(W-2) if not last else (10-2*rp)})")
            for dp in range(4):
                lo = V_VM + (2*rp)*4 + dp
                hi = V_VM + (2*rp+1)*4 + dp
                a(f"v_perm_b32 v{V_VT + (2*dp)*4 + rp}, v{hi}, v{lo}, s{S_SEL0}")
                a(f"v_perm_b32 v{V_VT + (2*dp+1)*4 + rp}, v{hi}, v{lo}, s{S_SEL1}")
            for z in range(12+2*rp, 12+2*rp+2): iss(z + W)
        a.c("O^T (d 0..127) += V^T.P^T, then the d 128..191 part")
        if pv_early:
            for t in range(8):
                a(f"v_mfma_f32_16x16x32_bf16 {vr(V_O + t*4)}, {vr(V_VT + t*4)}, {vr(V_PK)}, {vr(V_O + t*4)}")
        for rp in range(2):
            a(f"s_waitcnt vmcnt({(W-2) if not last else (2-2*rp)})")
            for dp in range(4):
                lo = V_VS + (2*rp)*4 + dp
                hi = V_VS + (2*rp+1)*4 + dp
                a(f"v_perm_b32 v{V_VT2 + (2*dp)*2 + rp}, v{hi}, v{lo}, s{S_SEL0}")
                a(f"v_perm_b32 v{V_VT2 + (2*dp+1)*2 + rp}, v{hi}, v{lo}, s{S_SEL1}")
            for z in range(20+2*rp, 20+2*rp+2): iss(z + W)
        if not pv_early:
            for t in range(8):
                a(f"v_mfma_f32_16x16x32_bf16 {vr(V_O + t*4)}, {vr(V_VT + t*4)}, {vr(V_PK)}, {vr(V_O + t*4)}")
        for t in range(8):
            a(f"v_mfma_f32_16x16x16_bf16 {vr(V_O2 + t*4)}, {vr(V_VT2 + t*2, 2)}, {vr(V_PP, 2)}, {vr(V_O2 + t*4)}")
        if stamps:
            a("s_memrealtime s[46:47]\n    s_waitcnt lgkmcnt(0)\n    s_mov_b32 m0, s{0}\n    s_nop 3\n    v_writelane_b32 v19, s46, m0".format(S_CNT))
        if magnify == 'iter1' and sfx == "0":
            a(f"s_cmp_eq_u32 s{S_CNT}, {NIT}")
            a(f"s_cbranch_scc0 L_nomg{sfx}")
            a("s_memrealtime s[60:61]")
            a.label(f"L_nomg{sfx}")
        if tl and sfx == "0":
            a(f"s_cmp_eq_u32 s{S_CNT}, {NIT}")
            a(f"s_cbranch_scc0 L_nost{sfx}")
            st(1)
            a.label(f"L_nost{sfx}")
        a(f"s_mov_b32 s{S_CUR}, s{S_NXT}")
        a(f"s_mov_b32 s{S_CUR+1}, s{S_NXT+1}")
        a(f"s_sub_u32 s{S_CNT}, s{S_CNT}, 1")

    def rescale(sfx):
        a.label(f"L_rescale{sfx}")
        a.c("a row maximum rose: new max over the 4 lane rows, rescale the sum and the accumulators")
        a(f"v_max_f32 v{V_T0}, v{V_T0}, v{V_M}")
        a(f"v_mov_b32 v{V_T1}, v{V_T0}")
        a("s_nop 1")
        a(f"v_permlane16_swap_b32 v{V_T1}, v{V_T0}")
        a("s_nop 1")
        a(f"v_max_f32 v{V_T0}, v{V_T0}, v{V_T1}")
        a(f"v_mov_b32 v{V_T1}, v{V_T0}")
        a("s_nop 1")
        a(f"v_permlane32_swap_b32 v{V_T1}, v{V_T0}")
        a("s_nop 1")
        a(f"v_max_f32 v{V_T0}, v{V_T0}, v{V_T1}")
        a(f"v_sub_f32 v{V_T1}, v{V_M}, v{V_T0}")
        a(f"v_mul_f32 v{V_T1}, s{S_C}, v{V_T1}")
        a(f"v_exp_f32 v{V_T1}, v{V_T1}")
        a(f"v_mov_b32 v{V_M}, v{V_T0}")
        a(f"v_mul_f32 v{V_MC}, s{S_C}, v{V_T0}")
        a(f"v_mul_f32 v{V_L}, v{V_L}, v{V_T1}")
        for i in range(64):
            a(f"v_mul_f32 v{V_O+i}, v{V_T1}, v{V_O+i}")
        a(f"s_branch L_back{sfx}")

    a(".p2align 6")
    if fb:
        theta = fb.get('theta', 4)
        bias = fb.get('bias', 16)
        a("s_branch L_loop0")
        a.label("L_disp")
        a(f"s_cmp_le_u32 s{S_CNT}, {T}")
        a("s_cbranch_scc1 L_totail")
        a.c("lead (in 1/32 iterations) of this wave over the die average, sampled one iteration ago")
        a(f"v_sad_u8 v{V_T0}, v{V_PR}, 0, 0")
        a(f"s_sub_u32 s28, {NIT}, s{S_CNT}")
        a("s_nop 0")
        a(f"v_add_u32_dpp v{V_T0}, v{V_T0}, v{V_T0} row_shr:1 row_mask:0xf bank_mask:0xf bound_ctrl:0")
        a(f"s_lshl_b32 s29, s28, 5")
        if fb.get('biasx'):
            a(f"s_sub_u32 s29, s29, s63")
        else:
            a(f"s_sub_u32 s29, s29, {32 + bias}")
        a(f"v_add_u32_dpp v{V_T0}, v{V_T0}, v{V_T0} row_shr:2 row_mask:0xf bank_mask:0xf bound_ctrl:0")
        a(f"v_mov_b32 v{V_T1}, s28")
        a("s_nop 0")
        a(f"v_add_u32_dpp v{V_T0}, v{V_T0}, v{V_T0} row_shr:4 row_mask:0xf bank_mask:0xf bound_ctrl:0")
        a(f"s_cmp_eq_u32 s{S_WAVE}, 0")
        a("s_cbranch_scc0 L_nopub")
        a("s_mov_b64 exec, 1")
        if not fb.get('nostore'): a(f"global_store_byte v{V_SLOT}, v{V_T1}, s[56:57]")
        a("s_mov_b64 exec, -1")
        if fb.get('wbl2'):
            a("s_lshr_b32 s30, s2, 3")
            a("s_cmp_eq_u32 s30, 0")
            a("s_cbranch_scc0 L_nopub")
            a(f"s_and_b32 s30, s28, {fb['wbl2']-1}")
            a("s_cmp_eq_u32 s30, 0")
            a("s_cbranch_scc0 L_nopub")
            if fb.get('xst'):
                a("s_mov_b64 exec, 1")
                a(f"v_add_u32 v{V_T2}, 128, v{V_SLOT}")
                a(f"global_store_byte v{V_SLOT}, v{V_T1}, s[56:57] sc1")
                a("s_mov_b64 exec, -1")
            else:
                a("buffer_wbl2 sc1")
        a.label("L_nopub")
        a(f"v_readlane_b32 s30, v{V_T0}, 7")
        a("s_mov_b64 exec, 0xff")
        if not fb.get('noload'): a(f"global_load_dword v{V_PR}, v{V_PADDR}, s[56:57] {fb.get('ld','sc1')}")
        a("s_mov_b64 exec, -1")
        a("s_sub_i32 s29, s29, s30")
        a("s_cmp_eq_u32 s28, 1")
        a("s_cselect_b32 s29, 0, s29")
        if stamps:
            a("s_mov_b32 s62, s29")
        a(f"s_cmp_gt_i32 s29, {theta}")
        a("s_cbranch_scc1 L_loop3")
        a(f"s_cmp_lt_i32 s29, {-theta}")
        a("s_cbranch_scc1 L_loop4")
        a(".p2align 6")
        body("0", True)
        a("s_branch L_disp")
        a(".p2align 6")
        body("3", True, bpat=fb['patM'])
        a("s_branch L_disp")
        a(".p2align 6")
        body("4", True, bpat=fb['patP'])
        a("s_branch L_disp")
        a.label("L_totail")
        a.c("entering the tail: publish 'done' so that slower peers see themselves behind")
        a(f"s_cmp_eq_u32 s{S_WAVE}, 0")
        a("s_cbranch_scc0 L_tail")
        a(f"v_mov_b32 v{V_T1}, {NIT}")
        a("s_mov_b64 exec, 1")
        a(f"global_store_byte v{V_SLOT}, v{V_T1}, s[56:57]")
        a("s_mov_b64 exec, -1")
        a.label("L_tail")
    elif Wb is None:
        body("0", True)
        a(f"s_cmp_gt_u32 s{S_CNT}, {T}")
        a("s_cbranch_scc1 L_loop0")
    else:
        body("0", True)
        a(f"s_cmp_le_u32 s{S_CNT}, {T}")
        a("s_cbranch_scc1 L_tail")
        a(f"s_bitcmp1_b32 s31, s{S_CNT}")
        a("s_cbranch_scc0 L_loop0")
        a(".p2align 6")
        body("2", True, Wb)
        a(f"s_cmp_le_u32 s{S_CNT}, {T}")
        a("s_cbranch_scc1 L_tail")
        a(f"s_bitcmp1_b32 s31, s{S_CNT}")
        a("s_cbranch_scc1 L_loop2")
        a("s_branch L_loop0")
        a.label("L_tail")
        if T == 0: pass
    if peel:
        assert T >= 2
        if tailW: body("1", True, bpat=tailW)
        else: body("1", False)
        a(f"s_cmp_gt_u32 s{S_CNT}, 1")
        a("s_cbranch_scc1 L_loop1")
        body("5", False, last=True)
    elif T > 0:
        body("1", False)
        a(f"s_cmp_lg_u32 s{S_CNT}, 0")
        a("s_cbranch_scc1 L_loop1")

    a.label("L_epi")
    a.c("merge the waves: every wave stores (m, l) and its O partials, waves 0..2 combine and store bf16")
    st(3)
    a(f"v_mov_b32 v{V_T0}, v{V_L}")
    a("s_mov_b32 exec_lo, 0x000f000f")
    a("s_mov_b32 exec_hi, 0x000f000f")
    for t in range(8):
        a(f"ds_write_b128 v{E_W}, {vr(V_O + t*4)} offset:{t*16}")
    a("s_mov_b64 exec, -1")
    a(f"v_permlane16_swap_b32 v{V_T0}, v{V_L}")
    a("s_nop 1")
    a(f"v_add_f32 v{V_L}, v{V_L}, v{V_T0}")
    a(f"v_mov_b32 v{V_T0}, v{V_L}")
    a("s_mov_b32 exec_lo, 0x000f000f")
    a("s_mov_b32 exec_hi, 0x0f000f00")
    for t in range(8):
        a(f"ds_write_b128 v{E_W}, {vr(V_O2 + t*4)} offset:{512 + t*16}")
    a("s_mov_b64 exec, -1")
    a(f"v_permlane32_swap_b32 v{V_T0}, v{V_L}")
    a("s_nop 1")
    a(f"v_add_f32 v{V_T1}, v{V_L}, v{V_T0}")
    a(f"v_mov_b32 v{V_T0}, v{V_M}")
    a("s_mov_b64 exec, 15")
    a(f"ds_write_b64 v{E_ML}, v[{V_T0}:{V_T1}] offset:{4*QS}")
    a("s_mov_b64 exec, -1")
    a("s_waitcnt lgkmcnt(0)")
    st(4)
    a("s_barrier")
    st(5)
    X, Y, ML = (32, 104, 120) if NW <= 4 else (V_O, V_O2, V_VT)
    def finish(nw, rout):
        if nw == 8:
            a(f"v_max3_f32 v{V_T0}, v{ML}, v{ML+2}, v{ML+4}")
            a(f"v_max3_f32 v{V_T0}, v{V_T0}, v{ML+6}, v{ML+8}")
            a(f"v_max3_f32 v{V_T0}, v{V_T0}, v{ML+10}, v{ML+12}")
            a(f"v_max_f32 v{V_T0}, v{V_T0}, v{ML+14}")
        elif nw == 4:
            a(f"v_max3_f32 v{V_T0}, v{ML}, v{ML+2}, v{ML+4}")
            a(f"v_max_f32 v{V_T0}, v{V_T0}, v{ML+6}")
        else:
            a(f"v_max_f32 v{V_T0}, v{ML}, v{ML+2}")
        for w in range(nw):
            a(f"v_sub_f32 v{ML+2*w}, v{ML+2*w}, v{V_T0}")
        for w in range(nw):
            a(f"v_mul_f32 v{ML+2*w}, s{S_C}, v{ML+2*w}")
        for w in range(nw):
            a(f"v_exp_f32 v{ML+2*w}, v{ML+2*w}")
        a("s_nop 0")
        a(f"v_mul_f32 v{V_T1}, v{ML}, v{ML+1}")
        for w in range(1, nw):
            a(f"v_fmac_f32 v{V_T1}, v{ML+2*w}, v{ML+2*w+1}")
        a(f"v_rcp_f32 v{V_T1}, v{V_T1}")
        a("s_waitcnt lgkmcnt(0)")
        for r in range(4):
            a(f"v_mul_f32 v{Y+r}, v{ML}, v{X+r}")
        for w in range(1, nw):
            for r in range(4):
                a(f"v_fmac_f32 v{Y+r}, v{ML+2*w}, v{X+4*w+r}")
        for r in range(4):
            a(f"v_mul_f32 v{Y+r}, v{Y+r}, v{V_T1}")
        a(f"v_cvt_pk_bf16_f32 v{Y+4}, v{Y}, v{Y+1}")
        a(f"v_cvt_pk_bf16_f32 v{Y+5}, v{Y+2}, v{Y+3}")
        a(f"global_store_short v{rout}, v{Y+4}, s[10:11]")
        a(f"global_store_short_d16_hi v{rout}, v{Y+4}, s[10:11] offset:16")
        a(f"global_store_short v{rout}, v{Y+5}, s[10:11] offset:32")
        a(f"global_store_short_d16_hi v{rout}, v{Y+5}, s[10:11] offset:48")
    if NW >= 4:
        a(f"s_cmp_ge_u32 s{S_WAVE}, 3")
        a("s_cbranch_scc1 L_fin")
        for w in range(NW):
            a(f"ds_read_b64 v[{ML+2*w}:{ML+2*w+1}], v{R_ML} offset:{w*WS + 4*QS}")
        for w in range(NW):
            a(f"ds_read_b128 {vr(X+4*w)}, v{R_A} offset:{w*WS}")
        a(f"s_cmp_eq_u32 s{S_WAVE}, 2")
        a("s_cbranch_scc0 L_noy")
        for w in range(NW):
            a(f"ds_read_b128 {vr(Y+4*w)}, v{R_A} offset:{w*WS + 256}")
        a("s_waitcnt lgkmcnt(0)")
        for w in range(NW):
            for r in range(4):
                a(f"v_add_f32 v{X+4*w+r}, v{X+4*w+r}, v{Y+4*w+r}")
        a.label("L_noy")
        a("s_waitcnt lgkmcnt(0)" if (tl or NW == 8) else "s_waitcnt lgkmcnt(4)")
        st(6)
        finish(NW, R_OUT)
    else:
        X2, Y2, ML2 = 128, 136, 144
        for w in range(2):
            a(f"ds_read_b64 v[{ML+2*w}:{ML+2*w+1}], v{R_ML} offset:{w*WS + 4*QS}")
        for w in range(2):
            a(f"ds_read_b128 {vr(X+4*w)}, v{R_A} offset:{w*WS}")
        for w in range(2):
            a(f"ds_read_b64 v[{ML2+2*w}:{ML2+2*w+1}], v{R_ML2} offset:{w*WS + 4*QS}")
        for w in range(2):
            a(f"ds_read_b128 {vr(X2+4*w)}, v{R_A2} offset:{w*WS}")
        for w in range(2):
            a(f"ds_read_b128 {vr(Y2+4*w)}, v{R_A2} offset:{w*WS + 256}")
        a("s_waitcnt lgkmcnt(0)")
        st(6)
        finish(2, R_OUT)
        for w in range(2):
            a(f"v_mov_b32 v{ML+2*w}, v{ML2+2*w}")
            a(f"v_mov_b32 v{ML+2*w+1}, v{ML2+2*w+1}")
            for r in range(4):
                a(f"v_add_f32 v{X+4*w+r}, v{X2+4*w+r}, v{Y2+4*w+r}")
        a("s_mov_b32 exec_hi, 0")
        finish(2, R_OUT2)
    a.label("L_fin")
    if magnify:
        a("s_waitcnt vmcnt(0)")
        a("s_memrealtime s[42:43]")
        a("s_waitcnt lgkmcnt(0)")
        if magnify == 'end':
            a("s_sub_u32 s27, s42, s40")
            a("s_sub_u32 s27, s27, 10000")
            a("s_max_i32 s27, s27, 0")
            a("s_mul_i32 s27, s27, 9")
        elif magnify == 'iter1':
            a("s_sub_u32 s27, s60, s40")
            a("s_mul_i32 s27, s27, 20")
        a("s_add_u32 s27, s27, s42")
        a.label("L_spin")
        a("s_memrealtime s[42:43]")
        a("s_waitcnt lgkmcnt(0)")
        a("s_sub_u32 s28, s42, s27")
        a("s_cmp_lt_i32 s28, 0")
        a("s_cbranch_scc1 L_spin")
    if tl:
        a("s_waitcnt vmcnt(0)")
        st(7)
        a("s_load_dwordx2 s[44:45], s[0:1], 40")
        a("s_waitcnt lgkmcnt(0)")
        a(f"s_mul_i32 s27, s2, {NW}\n    s_add_u32 s27, s27, s{S_WAVE}\n    s_lshl_b32 s27, s27, 6\n    s_add_u32 s27, s27, 0x20000")
        a("v_mov_b32 v0, s27")
        a("s_mov_b64 exec, 1")
        for i in range(8):
            a(f"v_mov_b32 v1, s{64+2*i}")
            a(f"global_store_dword v0, v1, s[44:45] offset:{4*i}")
    if stamps:
        a(f"s_mul_i32 s27, s2, {NW}\n    s_add_u32 s27, s27, s{S_WAVE}\n    s_lshl_b32 s27, s27, 8\n    s_add_u32 s27, s27, 0x80000")
        a(f"v_lshlrev_b32 v0, 2, v{V_LANE}\n    v_add_u32 v0, s27, v0\n    global_store_dword v0, v19, s[44:45]")
        a("s_waitcnt vmcnt(0)")
        a("s_memrealtime s[42:43]")
        a("s_waitcnt lgkmcnt(0)")
        a(f"s_mul_i32 s27, s2, {NW}\n    s_add_u32 s27, s27, s{S_WAVE}\n    s_lshl_b32 s27, s27, 4")
        a("s_getreg_b32 s28, hwreg(HW_REG_XCC_ID)\n    s_and_b32 s28, s28, 0xf\n    s_lshl_b32 s28, s28, 24\n    s_or_b32 s43, s43, s28")
        a("v_mov_b32 v0, s27\n    v_mov_b32 v4, s40\n    v_mov_b32 v5, s41\n    v_mov_b32 v6, s42\n    v_mov_b32 v7, s43")
        a("s_mov_b64 exec, 1\n    global_store_dwordx4 v0, v[4:7], s[44:45]")
        a("s_getreg_b32 s28, hwreg(HW_REG_HW_ID)\n    s_lshr_b32 s27, s27, 2\n    s_add_u32 s27, s27, 0x60000\n    v_mov_b32 v0, s27\n    v_mov_b32 v4, s28\n    global_store_dword v0, v4, s[44:45]")
    a.label("L_done")
    a("s_endpgm")
    rescale("0")
    if T > 0: rescale("1")
    if peel: rescale("5")
    if Wb is not None: rescale("2")
    if fb:
        rescale("3")
        rescale("4")

    a.label("L_codeend")
    lds = NW * WS
    nfv = NVGPR + NAGPR
    if fake_nfv: nfv = fake_nfv
    if fake_lds: lds = fake_lds
    kd = f""".section .rodata,"a"
.p2align 6
.amdhsa_kernel {name}
  .amdhsa_next_free_vgpr {nfv}
  .amdhsa_next_free_sgpr 96
  .amdhsa_accum_offset {NVGPR}
  .amdhsa_group_segment_fixed_size 0
  .amdhsa_kernarg_size 48
  .amdhsa_user_sgpr_count 2
  .amdhsa_user_sgpr_kernarg_segment_ptr 1
  .amdhsa_system_sgpr_workgroup_id_x 1
  .amdhsa_float_denorm_mode_32 3
.end_amdhsa_kernel
"""
    body_txt = a.text()
    if name != "standalone__mha_softmax__sampling_kernel":
        body_txt = body_txt.replace("L_", name + "_L_")
    return body_txt, kd, lds, nfv, NW*64

HEADER = """; Kernarg layout for this problem (48 bytes, ptrs only, base s[0:1]):
;
; Every wave streams groups of 32 keys straight from HBM into registers (no LDS, no barrier in the main loop):
; The four waves are merged through LDS at the end (max, sum, output), result stored as bf16.
"""

def write_kernel(path, **kw):
    name = "standalone__mha_softmax__sampling_kernel"
    body, kd, lds, nfv, nthr = gen(name=name, **kw)
    with open(path, "w") as f:
        f.write(HEADER)
        f.write(f"; @launch grid=(256,1,1) block=({nthr},1,1) lds={lds}\n")
        f.write('.amdgcn_target "amdgcn-amd-amdhsa--gfx950"\n.text\n')
        f.write(f".globl {name}\n.p2align 8\n.type {name},@function\n")
        f.write(body)
        f.write(kd)

if __name__ == "__main__":
    out = sys.argv[1] if len(sys.argv) > 1 else "standalone__mha_softmax__sampling.s"
    write_kernel(out)
```

```python
import gen7 as g
kw = dict(pat=[6,6,5], T=3, ab=(11,1), pv_early=True, warm=2, peel=True,
          fb=dict(theta=4, patM=[5], patP=[7,6,7], bias=21, biasx=[4,1,3,0,4,3,4,2]))
g.write_kernel('standalone__mha_softmax__sampling.s', **kw)
```
